```python
import torch

def _softmax(x, axis=-1):
    return torch.softmax(x, dim=axis)
def _gelu(x):
    return torch.nn.functional.gelu(x, approximate="tanh")
def _silu(x):
    return torch.nn.functional.silu(x)
def _sigmoid(x):
    return torch.sigmoid(x)
def _layernorm(x, axis=-1, eps=1e-5):
    m = x.mean(dim=axis, keepdim=True)
    v = x.var(dim=axis, keepdim=True, unbiased=False)
    return (x - m) / torch.sqrt(v + eps)
def _scatter_add(tgt, idx, src, axis=0):
    return tgt.clone().index_add_(axis, idx, src)
def _segment_sum(src, seg, n):
    out = torch.zeros((n,) + src.shape[1:], dtype=src.dtype)
    return out.index_add_(0, seg, src)
def _pad(x, pw):
    flat = tuple(v for pair in reversed(pw) for v in pair)
    return torch.nn.functional.pad(x, flat)

kernel_name = 'recurrent_scan__mha_block__mixer_channel_mlp__prompt'

def setup_inputs():

    _w = (lambda a: (lambda t: t.to(torch.bfloat16) if t.is_floating_point() else t)(torch.as_tensor(a)))
    def _A_setup():
        B, S, D, H = 1, 2048, 1024, 32
        return {
            "x": _w((lambda *s: torch.randn(*s, dtype=torch.bfloat16) * 0.05)(B, S, D)),
            "wqkv": _w((lambda *s: torch.randn(*s, dtype=torch.bfloat16) * 0.05)(D, 3 * D)),
            "wo": _w((lambda *s: torch.randn(*s, dtype=torch.bfloat16) * 0.05)(D, D)),
        }
    _A_in = _A_setup()

    def _B_setup():
        B, S, D, F = 1, 2048, 1024, 3584
        return {
            "x": _w((lambda *s: torch.randn(*s, dtype=torch.bfloat16) * 0.05)(B, S, D)),
            "w1": _w((lambda *s: torch.randn(*s, dtype=torch.bfloat16) * 1.6)(D, F) * (D ** -0.5)),
            "b1": _w((lambda *s: torch.randn(*s, dtype=torch.bfloat16) * 0.8)(F)),
            "w2": _w((lambda *s: torch.randn(*s, dtype=torch.bfloat16) * 0.05)(F, D) * (F ** -0.5)),
            "b2": _w((lambda *s: torch.randn(*s, dtype=torch.bfloat16) * 0.05)(D)),
        }
    _B_in = _B_setup()

    return {
        "A_x": _A_in["x"],
        "A_wqkv": _A_in["wqkv"],
        "A_wo": _A_in["wo"],
        "B_x": _B_in["x"],
        "B_w1": _B_in["w1"],
        "B_b1": _B_in["b1"],
        "B_w2": _B_in["w2"],
        "B_b2": _B_in["b2"],
    }

def reference(A_x, A_wqkv, A_wo, B_x, B_w1, B_b1, B_w2, B_b2):
    def _A_ref(x, wqkv, wo):
        B, S, D = x.shape
        H = 32
        Dh = D // H
        qkv = (lambda x, *d: x.permute(*d))((x @ wqkv).reshape(B, S, 3, H, Dh), 2, 0, 3, 1, 4)
        q, k, v = qkv[0], qkv[1], qkv[2]
        scores = torch.einsum("bhqd,bhkd->bhqk", q, k) * (Dh ** -0.5)
        p = _softmax(scores, axis=-1)
        o = torch.einsum("bhqk,bhkd->bhqd", p, v)
        return (lambda x, *d: x.permute(*d))(o, 0, 2, 1, 3).reshape(B, S, D) @ wo

    def _B_ref(x, w1, b1, w2, b2):
        y = _layernorm(x, axis=-1)
        h = _gelu(torch.einsum("bsd,df->bsf", y, w1) + b1)
        return torch.einsum("bsf,fd->bsd", h, w2) + b2

    x = A_x
    xn = _layernorm(x, axis=-1)
    s = _A_ref(xn, A_wqkv, A_wo)
    g = _silu(_B_ref(xn, B_w1, B_b1, B_w2, B_b2))
    return x + s * g
```

```python
import re

class Asm:
    def __init__(self):
        self.lines = []
        self.vm = []
        self.lg = []
        self.vm_done = 0
        self.lg_done = 0
    def __call__(self, s, *a):
        for ln in s.split("\n"):
            ln = ln.strip()
            if ln: self.lines.append("    " + ln)
    def raw(self, s): self.lines.append(s)
    def label(self, l): self.lines.append(l + ":")
    def comment(self, s): self.lines.append("    ; " + s)
    def vmem(self, s, tag=None):
        self(s); self.vm.append(tag)
    def lds(self, s, tag=None):
        self(s); self.lg.append(tag)
    def _cnt(self, q, tags):
        last = -1
        for i, t in enumerate(q):
            if t in tags: last = i
        assert last >= 0, f"tag {tags} never issued"
        return len(q) - 1 - last
    def wait_vm(self, *tags, force=False):
        n = self._cnt(self.vm, tags)
        need = len(self.vm) - n
        if need <= self.vm_done and not force: return None
        n = min(n, 63)
        self(f"s_waitcnt vmcnt({n})")
        self.vm_done = max(self.vm_done, len(self.vm) - n)
        return n
    def wait_lg(self, *tags, force=False):
        n = self._cnt(self.lg, tags)
        need = len(self.lg) - n
        if need <= self.lg_done and not force: return None
        n = min(n, 15)
        self(f"s_waitcnt lgkmcnt({n})")
        self.lg_done = max(self.lg_done, len(self.lg) - n)
        return n
    def all_vm(self):
        self("s_waitcnt vmcnt(0)"); self.vm_done = len(self.vm)
    def all_lg(self):
        self("s_waitcnt lgkmcnt(0)"); self.lg_done = len(self.lg)
    def text(self): return "\n".join(self.lines) + "\n"

def vr(base, n=1, k="v"):
    return f"{k}{base}" if n == 1 else f"{k}[{base}:{base+n-1}]"
def ar(base, n=1): return vr(base, n, "a")
def sr(base, n=1): return vr(base, n, "s")

def srd(a, dst, ptr_lo, nbytes, off=0):
    if off:
        a(f"s_add_u32 s{dst}, s{ptr_lo}, {off}")
        a(f"s_addc_u32 s{dst+1}, s{ptr_lo+1}, 0")
    else:
        a(f"s_mov_b32 s{dst}, s{ptr_lo}")
        a(f"s_mov_b32 s{dst+1}, s{ptr_lo+1}")
    a(f"s_mov_b32 s{dst+2}, {nbytes}")
    a(f"s_mov_b32 s{dst+3}, 0x00020000")

def kernel_header(name):
    return f""".text
.globl {name}
.p2align 8
.type {name},@function
{name}:
"""
def kernel_desc(name, vgpr, accum, sgpr=102):
    return f""".section .rodata,"a"
.p2align 6
.amdhsa_kernel {name}
  .amdhsa_next_free_vgpr {vgpr}
  .amdhsa_next_free_sgpr {sgpr}
  .amdhsa_accum_offset {accum}
  .amdhsa_group_segment_fixed_size 0
  .amdhsa_kernarg_size 88
  .amdhsa_user_sgpr_count 2
  .amdhsa_user_sgpr_kernarg_segment_ptr 1
  .amdhsa_system_sgpr_workgroup_id_x 1
  .amdhsa_float_denorm_mode_32 3
.end_amdhsa_kernel
"""

_reg = re.compile(r"([vas])\[(\d+):(\d+)\]|(?<![\w\[])([vas])(\d+)(?![\w\]:])")
def regs_of(op):
    out = set()
    for m in _reg.finditer(op):
        if m.group(1):
            out |= {(m.group(1), i) for i in range(int(m.group(2)), int(m.group(3)) + 1)}
        else:
            out.add((m.group(4), int(m.group(5))))
    return out
TRANS = ("v_exp_f32", "v_log_f32", "v_rcp_f32", "v_rsq_f32", "v_sqrt_f32", "v_sin_f32", "v_cos_f32")
def parse(line):
    s = line.split(";")[0].strip()
    if not s or s.endswith(":") or s.startswith("."): return None
    parts = s.split(None, 1)
    op = parts[0]; rest = parts[1] if len(parts) > 1 else ""
    ops = [x.strip() for x in re.split(r",(?![^\[]*\])", rest)] if rest else []
    return op, ops, s
def classify(op, ops):
    w = set(); r = set(); kind = "other"
    R = [regs_of(o) for o in ops]
    if op.startswith("v_mfma"):
        kind = "mfma"; w = R[0]; r = R[1] | R[2] | (R[3] if len(R) > 3 else set())
    elif op.startswith("v_cmp"):
        kind = "valu"; w = R[0] if ops[0] != "vcc" else {("s", "vcc")}; r = set().union(*R[1:])
    elif op.startswith("v_readfirstlane") or op.startswith("v_readlane"):
        kind = "valu_rl"; w = R[0]; r = set().union(*R[1:])
    elif op.startswith("v_permlane") and "swap" in op:
        kind = "perm"; w = R[0] | R[1]; r = R[0] | R[1]
    elif op.startswith("v_"):
        kind = "valu"; w = R[0]; r = set().union(*R[1:]) if len(R) > 1 else set()
        if op.startswith(("v_fmac", "v_dot2c", "v_pk_fmac")): r |= R[0]
        if op.startswith(("v_add_co", "v_addc_co", "v_sub_co")):
            w = R[0] | {("s", "vcc")}
    elif op.startswith(("buffer_load", "global_load")):
        kind = "vload"
        if "lds" in ops[-1] or "_lds_" in op: w = set(); r = set().union(*R)
        else: w = R[0]; r = set().union(*R[1:])
    elif op.startswith(("buffer_store", "global_store", "buffer_atomic", "global_atomic")):
        kind = "vstore"; r = set().union(*R)
    elif op.startswith("ds_read") or op.startswith("ds_bpermute") or op.startswith("ds_swizzle"):
        kind = "dsread"; w = R[0]; r = set().union(*R[1:])
    elif op.startswith("ds_"):
        kind = "dswrite"; r = set().union(*R)
    elif op.startswith("s_"):
        kind = "salu"
        if op.startswith(("s_waitcnt", "s_barrier", "s_nop", "s_cbranch", "s_branch", "s_cmp", "s_setprio", "s_endpgm", "s_sleep")):
            r = set().union(*R) if R else set()
        else:
            w = R[0] if R else set(); r = set().union(*R[1:]) if len(R) > 1 else set()
            if ops and ops[0] == "m0": w = {("s", "m0")}
    return kind, w, r
def check_hazards(text, name=""):
    ins = []
    for ln in text.split("\n"):
        p = parse(ln)
        if p: ins.append(p)
    probs = []
    info = []
    for op, ops, s in ins:
        k, w, r = classify(op, ops)
        states = 1
        if op == "s_nop": states = int(ops[0], 0) + 1
        info.append((op, ops, s, k, w, r, states))
    n = len(info)
    def scan(i, maxd, pred, need_fn):
        d = 0
        j = i - 1
        while j >= 0 and d < maxd:
            need = pred(info[j])
            if need is not None and d < need:
                probs.append(f"{name}: '{info[j][2]}' -> '{info[i][2]}' needs {need} wait states, has {d}")
            d += info[j][6]
            j -= 1
    for i, (op, ops, s, k, w, r, st) in enumerate(info):
        vr_ = {x for x in r if x[0] in "va"}
        vw_ = {x for x in w if x[0] in "va"}
        is_dpp = ("row_" in s or "quad_perm" in s or "row_bcast" in s)
        def pred(p):
            pop, pops, ps, pk, pw, pr, _ = p
            need = None
            def up(x):
                nonlocal need
                need = x if need is None else max(need, x)
            if k == "mfma" and pk in ("valu", "perm") and (pw & vr_): up(2)
            if pk == "mfma":
                passes = 8 if "32x32" in pop else 4
                D = pw
                if k == "mfma":
                    R = [regs_of(o) for o in ops]
                    C = R[3] if len(R) > 3 else set()
                    if (D & (R[1] | R[2])): up({4: 8, 8: 12}[passes])
                    if (D & C) and not (C == D and pop == op): up({4: 6, 8: 10}[passes])
                elif k in ("valu", "valu_rl", "perm", "vstore", "dswrite", "vload", "dsread"):
                    if D & (vr_ | vw_): up({4: 8, 8: 12}[passes])
                    Rp = [regs_of(o) for o in pops]
                    Cp = Rp[3] if len(Rp) > 3 else set()
                    if k in ("valu", "perm") and (Cp & vw_): up({4: 3, 8: 7}[passes])
            if pk == "valu" and pop.split("_e")[0] in TRANS and k in ("valu", "perm", "valu_rl") and op.split("_e")[0] not in TRANS and (pw & vr_): up(1)
            if pk == "valu" and pop.split("_e")[0] in TRANS and k == "mfma" and (pw & vr_): up(2)
            if pk in ("valu", "perm") and k == "valu_rl" and (pw & vr_): up(1)
            if pk in ("valu", "perm") and k == "perm" and (pw & vr_): up(2)
            if pk in ("valu", "perm") and is_dpp and k == "valu" and (pw & vr_): up(2)
            if pk in ("valu", "valu_rl") and k in ("vload", "vstore") and ({x for x in pw if x[0] == "s"} & r): up(5)
            if pk in ("valu", "valu_rl") and k in ("valu",) and ({x for x in pw if x[0] == "s"} & r): up(2)
            if pk in ("valu",) and ("s", "vcc") in pw and op.startswith("v_cndmask") and "vcc" in s: up(2)
            if pk == "salu" and ("s", "m0") in pw and k == "vload" and ("lds" in s): up(1)
            if pk == "vstore" and (("x4" in pop) or ("x3" in pop)) and k in ("valu", "perm", "valu_rl"):
                data = regs_of(pops[0]) if pop.startswith("buffer") else regs_of(pops[1])
                if data & vw_: up(2)
            return need
        scan(i, 20, pred, None)
    return probs

STAMP_OFF = 0x8000000
class Stamps:
    def __init__(self, on, kidx):
        self.on = on; self.k = kidx; self.n = 0
    def mark(self, a):
        if not self.on: return
        i = self.n; self.n += 1
        assert i < 8
        a(f"s_memtime s[{70+4*i}:{71+4*i}]")
        a(f"s_memrealtime s[{72+4*i}:{73+4*i}]")
    def flush(self, a, ws_srd, wave_sgpr, waves):
        if not self.on: return
        a("s_waitcnt vmcnt(0) lgkmcnt(0)")
        self.mark(a)
        a("s_waitcnt lgkmcnt(0)")
        a(f"s_mul_i32 s68, s2, {waves}")
        a(f"s_add_u32 s68, s68, s{wave_sgpr}")
        a("s_lshl_b32 s68, s68, 6")
        a(f"s_add_u32 s68, s68, {STAMP_OFF + self.k * 0x100000}")
        a("s_mov_b64 exec, 1")
        a("v_mov_b32 v2, 0")
        for i in range(self.n):
            a(f"v_mov_b32 v0, s{70+4*i}")
            a(f"v_mov_b32 v1, s{72+4*i}")
            a(f"buffer_store_dwordx2 v[0:1], v2, s[{ws_srd}:{ws_srd+3}], s68 offen offset:{8*i}")
            a("s_nop 1")
```

```python
import sys, importlib
sys.path.insert(0, "gen")
from asmlib import check_hazards
HEAD = open("recurrent_scan__mha_block__mixer_channel_mlp__prompt.s.ref").read().split("; Override launch")[0]
def build(mods, out=None, **opts):
    launches=[]; code=[]; descs=[]
    for m in mods:
        mod = importlib.import_module(m); importlib.reload(mod)
        c,d,l = mod.gen(**opts.get(m, {}))
        probs = check_hazards(c, m)
        for p in probs[:40]: print("HAZARD", p)
        if probs: print(f"{m}: {len(probs)} hazard reports")
        launches.append(l); code.append(c); descs.append(d)
    txt = HEAD + "\n".join(launches) + "\n" + '.amdgcn_target "amdgcn-amd-amdhsa--gfx950"\n' + "\n".join(code) + "\n".join(descs)
    if out: open(out, "w").write(txt)
    return txt
if __name__ == "__main__":
    mods = sys.argv[2:]
    build(mods, sys.argv[1])
```
